```python
import torch

def _softmax(x, axis=-1):
    return torch.softmax(x, dim=axis)
def _gelu(x):
    return torch.nn.functional.gelu(x, approximate="tanh")
def _silu(x):
    return torch.nn.functional.silu(x)
def _sigmoid(x):
    return torch.sigmoid(x)
def _layernorm(x, axis=-1, eps=1e-5):
    m = x.mean(dim=axis, keepdim=True)
    v = x.var(dim=axis, keepdim=True, unbiased=False)
    return (x - m) / torch.sqrt(v + eps)
def _scatter_add(tgt, idx, src, axis=0):
    return tgt.clone().index_add_(axis, idx, src)
def _segment_sum(src, seg, n):
    out = torch.zeros((n,) + src.shape[1:], dtype=src.dtype)
    return out.index_add_(0, seg, src)
def _pad(x, pw):
    flat = tuple(v for pair in reversed(pw) for v in pair)
    return torch.nn.functional.pad(x, flat)

kernel_name = 'gated_mix__ssm_conv_h3__swiglu_ffn__prompt'

def setup_inputs():

    _w = (lambda a: (lambda t: t.to(torch.bfloat16) if t.is_floating_point() else t)(torch.as_tensor(a)))
    def _A_setup():
        B, S, D = 1, 2048, 448
        ks = 4
        return {
            "q": _w((lambda *s: torch.randn(*s, dtype=torch.bfloat16) * 0.05)(B, S, D)),
            "k": _w((lambda *s: torch.randn(*s, dtype=torch.bfloat16) * 0.2)(B, S, D)),
            "v": _w((lambda *s: torch.randn(*s, dtype=torch.bfloat16) * 0.2)(B, S, D)),
            "shift_k": _w((lambda *s: torch.randn(*s, dtype=torch.bfloat16) * 0.2)(D, ks) * 0.5),
            "ssm_k": _w((lambda *s: torch.randn(*s, dtype=torch.bfloat16) * 0.8)(D, S) * (1.0 / S ** 0.5)),
            "ssm_D": _w((lambda *s: torch.randn(*s, dtype=torch.bfloat16) * 0.2)(D)),
        }
    _A_in = _A_setup()

    def _B_setup():
        B, S, D, F = 1, 2048, 448, 1792
        return {
            "x": _w((lambda *s: torch.randn(*s, dtype=torch.bfloat16) * 0.05)(B, S, D)),
            "w_gate": _w((lambda *s: torch.randn(*s, dtype=torch.bfloat16) * 0.05)(D, F)),
            "w_up": _w((lambda *s: torch.randn(*s, dtype=torch.bfloat16) * 0.05)(D, F)),
            "w_down": _w((lambda *s: torch.randn(*s, dtype=torch.bfloat16) * 0.05)(F, D)),
        }
    _B_in = _B_setup()

    return {
        "A_q": _A_in["q"],
        "A_k": _A_in["k"],
        "A_v": _A_in["v"],
        "A_shift_k": _A_in["shift_k"],
        "A_ssm_k": _A_in["ssm_k"],
        "A_ssm_D": _A_in["ssm_D"],
        "B_x": _B_in["x"],
        "B_w_gate": _B_in["w_gate"],
        "B_w_up": _B_in["w_up"],
        "B_w_down": _B_in["w_down"],
        "gate_w": _w((lambda *s: torch.randn(*s, dtype=torch.bfloat16) * 0.05)(448) * 16.0),
    }

def reference(A_q, A_k, A_v, A_shift_k, A_ssm_k, A_ssm_D, B_x, B_w_gate, B_w_up, B_w_down, gate_w):
    def _A_ref(q, k, v, shift_k, ssm_k, ssm_D):
        B, S, D = q.shape
        ks = shift_k.shape[-1]
        k_pad = _pad(k, ((0, 0), (ks - 1, 0), (0, 0)))
        k_shift = torch.zeros_like(k)
        for t in range(ks):
            k_shift = k_shift + k_pad[:, t:t + S, :] * shift_k[:, ks - 1 - t][None, None, :]
        kv = k_shift * v
        L = 2 * S
        kv_pad = _pad(kv, ((0, 0), (0, S), (0, 0)))
        kf_pad = _pad(ssm_k, ((0, 0), (0, S)))
        kv_f = (lambda x, axes=(-2,-1): torch.fft.rfft2(x.float(), dim=axes))(kv_pad[:, None, :, :], axes=(1, 2))
        kf_f = (lambda x, axes=(-2,-1): torch.fft.rfft2(x.float(), dim=axes))(kf_pad[:, None, :], axes=(1, 2))
        kf_f = (lambda x, *d: x.permute(*d))(kf_f, 1, 2, 0)
        y_f = kv_f * kf_f[None, :, :, :]
        y = (lambda x, s, axes=(-2,-1): torch.fft.irfft2(x, s=s, dim=axes).to(torch.bfloat16))(y_f, (1, L), axes=(1, 2))[:, 0, :S, :]
        y = y + kv * ssm_D[None, None, :]
        return q * y

    def _B_ref(x, w_gate, w_up, w_down):
        g = _silu(x @ w_gate)
        u = x @ w_up
        return (g * u) @ w_down

    x = A_q
    g = _sigmoid((x * gate_w).sum(-1, keepdims=True))
    a = _A_ref(x, A_k, A_v, A_shift_k, A_ssm_k, A_ssm_D)
    b = _B_ref(x, B_w_gate, B_w_up, B_w_down)
    return g * a + (1 - g) * b
```

```python
import re

class Asm:
    def __init__(self):
        self.lines = []
        self.vm = 0
        self.lg = 0
        self.vm_done = 0
        self.lg_done = 0
    def e(self, s):
        for l in s.strip("\n").split("\n"):
            l = l.strip()
            if l: self.lines.append(l)
    def c(self, s): self.lines.append("; " + s)
    def label(self, s): self.lines.append(s + ":")
    def vmem(self, s):
        self.e(s); self.vm += 1; return self.vm
    def ds(self, s):
        self.e(s); self.lg += 1; return self.lg
    def wait(self, vm=None, lg=None):
        parts = []
        if vm is not None and vm > self.vm_done:
            n = min(self.vm - vm, 63); parts.append(f"vmcnt({n})"); self.vm_done = self.vm - n
        if lg is not None and lg > self.lg_done:
            n = min(self.lg - lg, 15); parts.append(f"lgkmcnt({n})"); self.lg_done = self.lg - n
        if parts: self.e("s_waitcnt " + " ".join(parts))
    def wait_all(self, vm=True, lg=True):
        parts = []
        if vm: parts.append("vmcnt(0)"); self.vm_done = self.vm
        if lg: parts.append("lgkmcnt(0)"); self.lg_done = self.lg
        self.e("s_waitcnt " + " ".join(parts))
    def nop(self, n):
        while n > 0:
            k = min(n, 16); self.e(f"s_nop {k-1}"); n -= k
    def text(self):
        out = []
        for l in self.lines:
            out.append(l if (l.endswith(":") or l.startswith(";") or l.startswith(".")) else "    " + l)
        return "\n".join(out) + "\n"

def vr(a, n=1, p="v"):
    return f"{p}{a}" if n == 1 else f"{p}[{a}:{a+n-1}]"
def ar(a, n=1): return vr(a, n, "a")
def sr(a, n=1): return vr(a, n, "s")

_reg = re.compile(r"\b([vas])(\d+)\b|\b([vas])\[(\d+):(\d+)\]")
def regs(op):
    out = set()
    for m in _reg.finditer(op):
        if m.group(1): out.add((m.group(1), int(m.group(2))))
        else: out.update((m.group(3), i) for i in range(int(m.group(4)), int(m.group(5))+1))
    if re.search(r"\bvcc\b", op): out.add(("s","vcc"))
    if re.search(r"\bm0\b", op): out.add(("s","m0"))
    if re.search(r"\bexec\b", op): out.add(("s","exec"))
    return out

TRANS = ("v_exp_f32","v_log_f32","v_rcp_f32","v_rsq_f32","v_sqrt_f32","v_sin_f32","v_cos_f32")
def parse(l):
    l = l.split(";")[0].strip()
    if not l or l.endswith(":") or l.startswith("."): return None
    p = l.split(None, 1); mn = p[0]; ops = [o.strip() for o in p[1].split(",")] if len(p) > 1 else []
    d = dict(mn=mn, w=set(), r=set(), kind="other", states=1, text=l)
    if mn == "s_nop": d["states"] = int(ops[0]) + 1; return d
    if mn.startswith("v_mfma"):
        d["kind"]="mfma"; d["w"]=regs(ops[0]); d["ab"]=regs(ops[1])|regs(ops[2]); d["c"]=regs(ops[3]); d["r"]=d["ab"]|d["c"]
        d["passes"] = 8 if "32x32" in mn else 4
    elif mn.startswith("v_"):
        d["kind"]="valu"
        if mn.startswith(("v_permlane","v_swap")):
            d["w"]=regs(ops[0])|regs(ops[1]); d["r"]=set(d["w"])
        elif mn.startswith("v_cmp"):
            d["w"]=regs(ops[0]); d["r"]=set().union(*[regs(o) for o in ops[1:]])
        else:
            d["w"]=regs(ops[0]); d["r"]=set().union(*[regs(o) for o in ops[1:]]) if len(ops)>1 else set()
            if mn.startswith(("v_fmac","v_dot2c")): d["r"] |= d["w"]
            if "_co_" in mn: d["w"] |= regs(ops[1]);
        d["trans"] = mn.startswith(TRANS); d["dot"] = mn.startswith("v_dot"); d["dpp"] = "dpp" in mn or "quad_perm" in l or "row_" in l
        d["sdwa"] = "sdwa" in mn
    elif mn.startswith("ds_"):
        d["kind"]="ds"
        if mn.startswith("ds_read") or "permute" in mn or "swizzle" in mn: d["w"]=regs(ops[0]); d["r"]=set().union(*[regs(o) for o in ops[1:]])
        else: d["r"]=set().union(*[regs(o) for o in ops])
    elif mn.startswith(("buffer_","global_")):
        d["kind"]="vmem"
        lds = l.endswith(" lds") or " lds " in l
        if "load" in mn and not lds: d["w"]=regs(ops[0]); d["r"]=set().union(*[regs(o) for o in ops[1:]])
        else:
            d["r"]=set().union(*[regs(o) for o in ops])
            if lds: d["r"].add(("s","m0")); d["lds"]=True
            if "store" in mn and ("x4" in mn or "x3" in mn): d["wide"]=regs(ops[0]) if mn.startswith("buffer") else regs(ops[1])
    elif mn.startswith("s_"):
        d["kind"]="salu"
        if mn.startswith(("s_cmp","s_waitcnt","s_barrier","s_cbranch","s_branch","s_endpgm","s_sleep","s_setprio","s_bitcmp")): d["r"]=set().union(*[regs(o) for o in ops]) if ops else set()
        elif ops: d["w"]=regs(ops[0]); d["r"]=set().union(*[regs(o) for o in ops[1:]]) if len(ops)>1 else set()
        if "saveexec" in mn: d["w"].add(("s","exec"))
    return d

def check_hazards(lines):
    ins = [(i, parse(l)) for i, l in enumerate(lines)]
    ins = [(i, d) for i, d in ins if d]
    errs = []
    for n, (i, d) in enumerate(ins):
        dist = 0
        for m in range(n-1, max(-1, n-24), -1):
            p = ins[m][1]
            need = 0
            vw = {x for x in p["w"] if x[0] in "va"}; sw = {x for x in p["w"] if x[0]=="s"}
            if p["kind"]=="valu":
                if d["kind"]=="mfma" and vw & d["r"]: need = max(need, 3 if p.get("dot") else 2)
                if d["kind"]=="valu":
                    if p.get("trans") and not d.get("trans") and vw & d["r"]: need=max(need,1)
                    if p.get("sdwa") and vw & (d["r"]|d["w"]): need=max(need,1)
                    if d.get("dpp") and vw & d["r"]: need=max(need,2)
                    if d["mn"].startswith("v_permlane") and vw & d["r"]: need=max(need,2)
                    if d["mn"].startswith(("v_readfirstlane","v_readlane")) and vw & d["r"]: need=max(need,1)
                    if sw & d["r"]: need=max(need,2)
                    if p.get("dot") and vw & (d["r"]|d["w"]):
                        same = d["mn"]==p["mn"]
                        if not same: need=max(need,3)
                        else:
                            ops=[o.strip() for o in d["text"].split(None,1)[1].split(",")]
                            if vw & (regs(ops[1])|regs(ops[2])): need=max(need,3)
                if p.get("dot") and d["kind"] in ("ds","vmem") and vw & d["r"]: need=max(need,3)
                if d["kind"]=="vmem" and sw & d["r"]: need=max(need,5)
                if d["kind"]=="salu" and sw & d["r"]: need=max(need,1)
            if p["kind"]=="salu" and ("s","m0") in p["w"] and d.get("lds"): need=max(need,1)
            if p["kind"]=="salu" and ("s","exec") in p["w"] and False: pass
            if p["kind"]=="vmem" and p.get("wide") and p["wide"] & d["w"]: need=max(need,2)
            if p["kind"]=="mfma":
                P = p["passes"]
                if d["kind"]=="mfma":
                    if p["w"] & d["ab"]: need=max(need, 12 if P==8 else 8)
                    if p["w"] & d["c"] and not (p["w"]==d["c"] and P==d["passes"]): need=max(need, 10 if P==8 else 6)
                    if p["w"] & d["w"] and not (p["w"]==d["c"]): need=max(need, 10 if P==8 else 6)
                elif d["kind"] in ("valu","ds","vmem"):
                    if p["w"] & (d["r"]|d["w"]): need=max(need, 12 if P==8 else 8)
                    if d["kind"]=="valu" and p["c"] & d["w"]: need=max(need, 7 if P==8 else 3)
            if need > dist:
                errs.append(f"line {i}: '{d['text']}' needs {need} states after line {ins[m][0]} '{p['text']}' has {dist}")
            dist += p["states"]
            if dist >= 20: break
    return errs
```

```python
import sys
from asmlib import *

NAME = "gated_mix__ssm_conv_h3__swiglu_ffn__prompt_kernel"
S, D, F = 2048, 448, 1792
WS_H, WS_UR, WS_Z, WS_G, WS_HF, WS_ZF, WS_DBG = 0, 0x800000, 0xA00000, 0xC00000, 0xC10000, 0xC11000, 0xD00000
LDS = 163840
XS = [0, 16384, 32768]
WSL = [49152, 114688, 81920]
HB, HCH = 114688, 16896
UB, UCH, U1 = 16384, 9472, 4640
EXB = 0
ZRB, ZSB = UB, UB + 8192
RB = 114688
SPIN = 1 << 15
STAMP = [76, 78, 40, 42, 44, 46, 52, 54, 56, 58, 60, 62]

class Opt:
    stamps = False
    rotB = True
    rotD = True
    flag_at = 20
    hpoll_at = 120
    pk = True

def srd(a, d, b, size):
    a.e(f"s_mov_b32 s{d}, s{b}\ns_mov_b32 s{d+1}, s{b+1}\ns_mov_b32 s{d+2}, {size}\ns_mov_b32 s{d+3}, 0x20000")

class Gen:
    def __init__(self, opt):
        self.o = opt; self.a = Asm(); self.nst = 0; self.nlab = 0
    def stamp(self):
        if self.o.stamps:
            r = STAMP[self.nst]; self.a.e(f"s_memrealtime s[{r}:{r+1}]"); self.nst += 1
    def dump_stamps(self):
        a = self.a
        if not self.o.stamps: return
        a.wait_all()
        a.e("s_lshl_b32 s3, s2, 2\ns_add_u32 s3, s3, s68\ns_lshl_b32 s3, s3, 6")
        a.e(f"s_add_u32 s3, s3, {WS_DBG}\nv_mov_b32 v1, s3")
        for i in range(self.nst):
            a.e(f"v_mov_b32 v2, s{STAMP[i]}")
            a.vmem(f"buffer_store_dword v2, v1, s[20:23], 0 offen offset:{4*i}")
        a.wait_all()
    def poll(self, load, tok, reg, want):
        a = self.a; n = self.nlab; self.nlab += 1
        a.wait(vm=tok)
        a.e(f"v_cmp_ne_u32 vcc, {want}, v{reg}\ns_nop 0\ns_cmp_eq_u64 vcc, 0\ns_cbranch_scc1 L_ok{n}\ns_mov_b32 s75, {SPIN}")
        a.label(f"L_poll{n}")
        a.e("s_sleep 1"); a.e(load); a.e("s_waitcnt vmcnt(0)")
        a.e(f"v_cmp_ne_u32 vcc, {want}, v{reg}\ns_nop 0\ns_cmp_eq_u64 vcc, 0\ns_cbranch_scc1 L_ok{n}")
        a.e(f"s_sub_u32 s75, s75, 1\ns_cmp_lg_u32 s75, 0\ns_cbranch_scc1 L_poll{n}")
        a.label(f"L_ok{n}")

    def prologue(self):
        a = self.a
        a.e("s_cmp_ge_u32 s2, 256\ns_cbranch_scc1 L_end")
        self.stamp()
        a.e("""s_load_dwordx16 s[40:55], s[0:1], 0
               s_load_dwordx8 s[56:63], s[0:1], 64
               s_load_dwordx4 s[64:67], s[0:1], 96
               v_lshrrev_b32 v2, 6, v0
               v_and_b32 v1, 63, v0
               v_readfirstlane_b32 s68, v2
               v_lshlrev_b32 v2, 4, v1
               s_cmp_ge_u32 s2, 224
               s_cbranch_scc1 L_helper""")

    def helper(self):
        a = self.a
        a.label("L_helper")
        a.vm = a.vm_done = a.lg = a.lg_done = 0
        self.nst = 1
        KCH = 16896
        a.e("""s_sub_u32 s69, s2, 224
               s_lshl_b32 s70, s69, 6            ; t0
               v_lshrrev_b32 v3, 3, v1           ; l>>3
               v_and_b32 v4, 7, v1
               v_and_b32 v5, 2, v3
               v_xor_b32 v4, v4, v5
               v_mul_u32_u24 v5, 896, v3
               v_lshl_add_u32 v6, v4, 4, v5      ; vE
               v_xor_b32 v4, 4, v4
               v_lshl_add_u32 v7, v4, 4, v5
               v_add_u32 v7, 6144, v7
               s_and_b32 s71, s68, 2
               s_or_b32 s71, s71, 4
               v_xor_b32 v8, s71, v1
               v_lshlrev_b32 v8, 4, v8
               s_add_u32 s71, s70, s68
               s_sub_u32 s71, s71, 4
               s_mul_i32 s71, s71, 896
               v_add_u32 v8, s71, v8
               v_and_b32 v9, 15, v1              ; c
               s_lshl_b32 s72, s68, 4
               v_add_u32 v10, s72, v9            ; 16w + c
               v_lshlrev_b32 v11, 3, v10
               s_waitcnt lgkmcnt(0)""")
        srd(a, 4, 40, S*D*2); srd(a, 8, 42, S*D*2); srd(a, 12, 44, S*D*2); srd(a, 16, 46, D*8)
        srd(a, 20, 66, 0x1000000); srd(a, 24, 60, D*2); srd(a, 36, 64, 256)
        a.e("s_mov_b64 exec, 0xff\ns_lshl_b32 s72, s68, 7")
        for c in range(7):
            a.e(f"s_add_u32 m0, s72, {c*KCH}\ns_movk_i32 s73, {128*c}")
            a.vmem("buffer_load_dwordx4 v8, s[8:11], s73 offen lds")
        a.e("s_mov_b64 exec, -1")
        tsh = [a.vmem(f"buffer_load_dwordx2 v[{32+2*c}:{33+2*c}], v11, s[16:19], 0 offen offset:{512*c}") for c in range(7)]
        a.e("s_lshl_b32 s72, s68, 4\ns_add_u32 s72, s72, s70\ns_mul_i32 s72, s72, 896\ns_lshl_b32 s73, s68, 11")
        tk = []
        for c in range(7):
            a.e(f"s_add_u32 m0, s73, {c*KCH+512}\ns_nop 0")
            a.vmem("buffer_load_dwordx4 v6, s[8:11], s72 offen lds")
            a.vmem("buffer_load_dwordx4 v7, s[8:11], s72 offen offset:1024 lds")
            a.e(f"s_add_u32 m0, s73, {c*KCH+8704}\ns_nop 0")
            a.vmem("buffer_load_dwordx4 v6, s[12:15], s72 offen lds")
            tk.append(a.vmem("buffer_load_dwordx4 v7, s[12:15], s72 offen offset:1024 lds"))
            a.e("s_add_u32 s72, s72, 128")
        a.e("""v_lshrrev_b32 v12, 2, v1
               s_lshl_b32 s72, s68, 4
               s_add_u32 s72, s72, s70
               v_add_u32 v12, s72, v12           ; token
               v_and_b32 v13, 3, v1
               v_lshlrev_b32 v13, 4, v13         ; 16*qd
               v_mul_u32_u24 v14, 896, v12
               v_add_u32 v14, v14, v13""")
        tq = [a.vmem(f"buffer_load_dwordx4 v[{128+4*i}:{131+4*i}], v14, s[4:7], 0 offen offset:{64*i}") for i in range(14)]
        a.e(f"""s_lshl_b32 s72, s69, 8
               s_add_u32 s72, s72, {WS_HF}
               v_lshlrev_b32 v15, 2, v1
               v_mov_b32 v16, 0""")
        a.vmem("buffer_store_dword v16, v15, s[20:23], s72 offen sc1")
        a.e("""v_lshrrev_b32 v17, 4, v1          ; g
               v_bfe_u32 v18, v1, 2, 2           ; r
               v_lshl_add_u32 v19, v17, 3, v18   ; 8g+r
               v_lshlrev_b32 v19, 7, v19         ; *128
               v_and_b32 v20, 1, v1
               v_lshl_add_u32 v19, v20, 3, v19   ; + 8*(c4&1)
               v_bfe_u32 v20, v1, 1, 1           ; c4>>1
               s_lshl_b32 s72, s68, 1
               v_or_b32 v20, s72, v20            ; chunk
               v_and_b32 v21, 2, v18
               v_xor_b32 v20, v20, v21
               v_and_b32 v21, 1, v17
               v_lshlrev_b32 v21, 2, v21
               v_xor_b32 v20, v20, v21
               v_lshl_add_u32 v22, v20, 4, v19
               v_xor_b32 v20, 4, v20
               v_lshl_add_u32 v21, v20, 4, v19
               v_lshlrev_b32 v23, 12, v10
               v_lshlrev_b32 v24, 4, v17
               v_sub_u32 v23, v23, v24
               s_lshl_b32 s72, s70, 1
               s_sub_u32 s72, 4016, s72          ; 2*(2040-32) - 2*t0
               v_add_u32 v23, s72, v23
               s_mov_b32 s74, 0x01000706""")
        tg = []
        for c in range(7):
            a.wait(vm=tk[c]); a.e("s_barrier")
            if c == 0:
                self.stamp()
                tg = [a.vmem(f"buffer_load_dwordx4 v[{192+4*i}:{195+4*i}], v13, s[24:27], 0 offen offset:{64*i}") for i in range(14)]
            rd = []
            for run in range(2):
                kb, vb = 48+10*run, 54+10*run
                a.ds(f"ds_read_b64_tr_b16 v[{kb}:{kb+1}], v21 offset:{4096*run}")
                a.ds(f"ds_read_b64_tr_b16 v[{kb+2}:{kb+3}], v22 offset:{4096*run+512}")
                a.ds(f"ds_read_b64_tr_b16 v[{kb+4}:{kb+5}], v22 offset:{4096*run+1024}")
                a.ds(f"ds_read_b64_tr_b16 v[{vb}:{vb+1}], v22 offset:{4096*run+8704}")
                rd.append(a.ds(f"ds_read_b64_tr_b16 v[{vb+2}:{vb+3}], v22 offset:{4096*run+8704+512}"))
            w0, w1 = 32+2*c, 33+2*c
            a.e(f"""v_alignbit_b32 v25, v{w0}, v{w0}, 16
                   v_alignbit_b32 v26, v{w1}, v{w1}, 16
                   v_and_b32 v27, 0xffff, v{w0}
                   v_alignbit_b32 v28, v{w1}, v{w0}, 16
                   v_and_b32 v29, 0xffff0000, v{w1}
                   v_alignbit_b32 v28, v28, v28, 16""")
            if c < 6: a.e(f"v_add_u32 v21, {KCH}, v21\nv_add_u32 v22, {KCH}, v22")
            a.e(f"s_mov_b32 s73, {WS_UR + c*64*4096}")
            for run in range(2):
                kb, vb = 48+10*run, 54+10*run
                o = 70 + 8*run; u = 86; p = 96 + 4*((2*c+run) % 4)
                a.wait(lg=rd[run])
                for j in range(4):
                    a.e(f"v_dot2_f32_bf16 v{o+2*j}, v{kb+j}, v29, 0")
                    a.e(f"v_dot2_f32_bf16 v{o+2*j+1}, v{kb+j+1}, v26, 0")
                for j in range(4):
                    a.e(f"v_dot2_f32_bf16 v{o+2*j}, v{kb+j+1}, v28, v{o+2*j}")
                    a.e(f"v_dot2_f32_bf16 v{o+2*j+1}, v{kb+j+2}, v25, v{o+2*j+1}")
                for j in range(4):
                    a.e(f"v_dot2_f32_bf16 v{o+2*j}, v{kb+j+2}, v27, v{o+2*j}")
                for j in range(4):
                    a.e(f"v_lshlrev_b32 v{u+2*j}, 16, v{vb+j}\nv_and_b32 v{u+2*j+1}, 0xffff0000, v{vb+j}")
                for j in range(8):
                    a.e(f"v_mul_f32 v{o+j}, v{o+j}, v{u+j}")
                for d in range(4):
                    a.e(f"v_cvt_pk_bf16_f32 v{p+d}, v{o+7-2*d}, v{o+6-2*d}")
                a.vmem(f"buffer_store_dwordx4 v[{p}:{p+3}], v23, s[20:23], s73 offen offset:{64*(1-run)} sc1")
        self.stamp()
        a.wait(vm=tg[-1])
        for j in range(4): a.e(f"v_dot2_f32_bf16 v{70+j}, v{128+j}, v{192+j}, 0")
        for i in range(1, 14):
            for j in range(4): a.e(f"v_dot2_f32_bf16 v{70+j}, v{128+4*i+j}, v{192+4*i+j}, v{70+j}")
        a.e(f"""s_nop 2
               v_add_f32 v70, v70, v71
               v_add_f32 v72, v72, v73
               v_add_f32 v70, v70, v72
               s_nop 1
               v_add_f32_dpp v71, v70, v70 quad_perm:[1,0,3,2] row_mask:0xf bank_mask:0xf
               s_nop 1
               v_add_f32_dpp v70, v71, v71 quad_perm:[2,3,0,1] row_mask:0xf bank_mask:0xf
               v_mul_f32 v70, 0xbfb8aa3b, v70
               v_exp_f32 v70, v70
               v_lshlrev_b32 v12, 2, v12
               v_add_f32 v70, 1.0, v70
               v_rcp_f32 v70, v70
               s_mov_b32 s73, {WS_G}
               s_mov_b32 exec_lo, 0x11111111
               s_mov_b32 exec_hi, 0x11111111""")
        a.vmem("buffer_store_dword v70, v12, s[20:23], s73 offen sc1")
        a.e("s_mov_b64 exec, -1")
        a.wait_all(); a.e("s_barrier")
        a.e("s_cmp_lg_u32 s68, 0\ns_cbranch_scc1 L_hdone\nv_mov_b32 v16, 1\ns_mov_b64 exec, 1")
        a.e("buffer_atomic_add v16, off, s[36:39], 0 sc1\ns_mov_b64 exec, -1")
        a.label("L_hdone")
        self.stamp()
        self.dump_stamps()
        a.e("s_endpgm")

    def worker(self):
        a = self.a; o = self.o
        a.e("""s_and_b32 s3, s2, 7
               s_lshr_b32 s69, s2, 3
               s_mul_i32 s71, s69, 37
               s_lshr_b32 s71, s71, 8            ; a = idx/7
               s_mul_i32 s72, s71, 7
               s_sub_u32 s72, s69, s72           ; cg = idx%7
               s_lshr_b32 s69, s3, 1
               s_lshl_b32 s69, s69, 2
               s_add_u32 s69, s69, s71           ; T
               s_and_b32 s70, s3, 1
               s_mul_i32 s70, s70, 7
               s_add_u32 s70, s70, s72           ; ft
               s_lshl_b32 s3, s3, 2
               s_add_u32 s71, s71, s3            ; tg
               s_lshr_b32 s73, s68, 1
               s_and_b32 s74, s68, 1
               v_lshrrev_b32 v27, 3, v1
               v_mul_u32_u24 v27, 896, v27
               v_lshrrev_b32 v28, 4, v1          ; l>>4
               v_and_b32 v29, 7, v1
               v_xor_b32 v30, v29, v28
               v_lshl_add_u32 v3, v30, 4, v27
               v_xor_b32 v30, 4, v30
               v_lshl_add_u32 v4, v30, 4, v27
               v_add_u32 v4, 6144, v4
               v_add_u32 v5, 12288, v3
               v_add_u32 v6, 12288, v4
               v_mul_u32_u24 v7, 3584, v28
               v_and_b32 v30, 15, v1
               v_lshlrev_b32 v31, 2, v28
               v_xor_b32 v30, v30, v31
               v_lshl_add_u32 v7, v30, 4, v7
               v_add_u32 v8, 13312, v7
               v_add_u32 v9, 26624, v7
               v_add_u32 v10, 39936, v7""")
        if o.rotB:
            a.e("s_add_u32 s92, s69, s70\ns_mul_i32 s3, s92, 37\ns_lshr_b32 s3, s3, 8\ns_mul_i32 s3, s3, 7\ns_sub_u32 s92, s92, s3")
        else:
            a.e("s_mov_b32 s92, 0")
        a.e("""s_lshl_b32 s93, s69, 7
               s_lshl_b32 s3, s68, 5
               s_add_u32 s93, s93, s3
               s_mul_i32 s93, s93, 896
               s_mul_i32 s94, s68, 57344
               s_lshl_b32 s3, s70, 8
               s_add_u32 s94, s94, s3
               s_lshl_b32 s95, s68, 12
               s_waitcnt lgkmcnt(0)""")
        srd(a, 4, 40, S*D*2); srd(a, 8, 54, D*F*2); srd(a, 12, 56, D*F*2)
        stage_tok = {}
        def stage_dma(s):
            sl = s % 3; L = []
            def pre():
                a.e("s_lshl_b32 s96, s92, 7\ns_add_u32 s96, s96, s93\ns_mul_i32 s97, s92, 229376\ns_add_u32 s97, s97, s94")
                a.e("s_add_u32 s92, s92, 1\ns_cmp_eq_u32 s92, 7\ns_cselect_b32 s92, 0, s92")
            L.append(pre)
            for grp, (base, srdn, so, vb) in enumerate(((XS[sl], 4, 96, 3), (WSL[sl], 8, 97, 7), (WSL[sl]+16384, 12, 97, 7))):
                for i in range(4):
                    def f(base=base, srdn=srdn, so=so, vb=vb, i=i, grp=grp):
                        if i == 0: a.e(f"s_add_u32 m0, s95, {base}\ns_nop 0")
                        t = a.vmem(f"buffer_load_dwordx4 v{vb+i}, s[{srdn}:{srdn+3}], s{so} offen offset:{1024*i} lds")
                        if grp == 2 and i == 3: stage_tok[s] = t
                    L.append(f)
            return L
        for s in range(3):
            for f in stage_dma(s): f()
        self.stamp()
        srd(a, 16, 58, D*F*2); srd(a, 20, 66, 0x1000000); srd(a, 24, 62, S*D*2); srd(a, 36, 64, 256)
        a.e(f"""s_lshl_b32 s3, s72, 5
               s_add_u32 s3, s3, s71
               s_lshl_b32 s3, s3, 1              ; c0
               s_lshl_b32 s98, s3, 1
               s_add_u32 s50, s50, s98
               s_addc_u32 s51, s51, 0
               s_load_dword s99, s[50:51], 0
               s_add_u32 s3, s3, s73
               s_lshl_b32 s98, s3, 12
               s_add_u32 s28, s48, s98
               s_addc_u32 s29, s49, 0
               s_sub_u32 s30, {D*S*2}, s98
               s_mov_b32 s31, 0x20000
               s_add_u32 s98, s98, {WS_UR}
               s_add_u32 s32, s66, s98
               s_addc_u32 s33, s67, 0
               s_movk_i32 s34, 4096
               s_mov_b32 s35, 0x20000
               s_add_u32 s100, s98, {WS_Z - WS_UR}
               v_and_b32 v27, 31, v1
               s_lshl_b32 s3, s73, 6
               v_add_u32 v27, s3, v27
               v_lshlrev_b32 v27, 7, v27
               v_lshrrev_b32 v29, 5, v1          ; hh
               v_bfe_u32 v30, v1, 1, 3
               v_xor_b32 v30, v30, v29""")
        for kk in range(4):
            a.e(f"v_xor_b32 v31, {2*kk}, v30\nv_lshl_add_u32 v{11+kk}, v31, 4, v27")
        a.e("""v_bfe_u32 v27, v1, 2, 2           ; r
               v_and_b32 v30, 3, v1              ; c4
               v_and_b32 v31, 1, v28             ; colhalf
               v_lshlrev_b32 v30, 3, v30
               v_lshl_add_u32 v30, v31, 5, v30
               v_lshl_add_u32 v31, v29, 3, v27   ; 8hh + r
               v_lshl_add_u32 v31, v31, 8, v30
               s_lshl_b32 s3, s74, 1
               v_xor_b32 v25, s3, v27
               v_lshl_add_u32 v26, v25, 6, v31
               v_xor_b32 v25, 1, v25
               v_lshl_add_u32 v25, v25, 6, v31""")
        for sl in range(3):
            a.e(f"v_add_u32 v{15+2*sl}, {WSL[sl]}, v26\nv_add_u32 v{16+2*sl}, {WSL[sl]}, v25")
        a.e(f"""v_lshrrev_b32 v21, 3, v1
               v_mul_u32_u24 v21, 896, v21
               v_and_b32 v22, 1, v28
               v_lshlrev_b32 v22, 2, v22
               v_and_b32 v25, 7, v1
               v_xor_b32 v22, v22, v25
               v_lshl_add_u32 v21, v22, 4, v21
               v_add_u32 v22, 6144, v21
               v_lshl_add_u32 v31, v29, 2, v27   ; 4hh + r
               v_lshl_add_u32 v31, v31, 7, v30
               s_lshl_b32 s3, s68, 13
               s_add_u32 s101, s3, {WSL[0]}
               v_add_u32 v31, s101, v31
               v_lshrrev_b32 v27, 1, v27         ; r>>1
               v_xor_b32 v27, s73, v27
               v_lshl_add_u32 v23, v27, 6, v31
               v_xor_b32 v27, 1, v27
               v_lshl_add_u32 v24, v27, 6, v31""")
        a.e(f"""v_and_b32 v27, 15, v1             ; m / n
               v_lshrrev_b32 v29, 1, v27
               v_lshlrev_b32 v29, 6, v29         ; 64*(m>>1)
               v_lshlrev_b32 v30, 4, v28         ; 16 g
               v_sub_u32 v25, v30, v29
               v_and_b32 v29, 1, v27
               v_xor_b32 v29, 1, v29
               v_mul_u32_u24 v29, {U1}, v29
               v_add_u32 v25, v25, v29
               s_mul_i32 s3, s73, {UCH}
               s_lshl_b32 s98, s74, 8
               s_add_u32 s3, s3, s98
               s_add_u32 s3, s3, {UB + 4032 - 3584}
               v_add_u32 v25, s3, v25
               v_add_u32 v27, 1, v27
               v_and_b32 v29, 3, v27             ; s
               v_lshrrev_b32 v27, 2, v27
               v_lshl_add_u32 v26, v27, 4, v30
               v_mul_u32_u24 v27, 4160, v29
               v_add_u32 v26, v26, v27
               v_min_u32 v29, 1, v29
               v_lshl_add_u32 v26, v29, 4, v26
               s_mul_i32 s3, s73, {HCH}
               s_add_u32 s3, s3, s98
               s_add_u32 s3, s3, {HB}
               v_add_u32 v26, s3, v26
               s_waitcnt lgkmcnt(0)
               s_lshl_b32 s3, s73, 4
               s_lshr_b32 s99, s99, s3
               s_and_b32 s99, s99, 0xffff
               s_cmp_eq_u32 s74, 0
               s_cselect_b32 s99, s99, 0""")
        VB = 32
        def acc(M, fi, ti): return 128 + 16*((fi*2+ti)*2+M)
        fr = {}
        def reads(q):
            s, kk = divmod(q, 4); sl = s % 3; b = VB + 24*(q % 2); L = []
            def rx(ti):
                def f(): fr[(q,'x',ti)] = a.ds(f"ds_read_b128 {vr(b+4*ti,4)}, v{11+kk} offset:{XS[sl]+4096*ti}")
                return f
            def rw(M, fi, e):
                def f(): fr[(q,M,fi)] = a.ds(f"ds_read_b64_tr_b16 {vr(b+8+8*fi+4*M+2*e,2)}, v{15+2*sl+fi} offset:{16384*M+(16*kk+4*e)*256}")
                return f
            return [rx(0), rw(0,0,0), rw(0,0,1), rx(1), rw(1,0,0), rw(1,0,1), rw(0,1,0), rw(0,1,1), rw(1,1,0), rw(1,1,1)]
        slow = []
        st = {}
        wd_tok = {}; wd_tr = {}
        def wd_dma(kl):
            sl = kl % 8; off = (32768 if sl < 4 else 0) + 2048*(sl % 4)
            def f0():
                if kl >= 8: a.wait(lg=wd_tr[kl-8])
                a.e(f"s_add_u32 m0, s101, {off}\ns_mul_i32 s97, s92, 14336\ns_add_u32 s97, s97, s94")
                a.vmem("buffer_load_dwordx4 v21, s[16:19], s97 offen lds")
            def f1():
                wd_tok[kl] = a.vmem("buffer_load_dwordx4 v22, s[16:19], s97 offen offset:1024 lds")
                a.e("s_add_u32 s92, s92, 1\ns_cmp_eq_u32 s92, 28\ns_cselect_b32 s92, 0, s92")
            return [f0, f1]
        def wd_read(kl):
            sl = kl % 8; off = (32768 if sl < 4 else 0) + 2048*(sl % 4); L = []
            for ci in range(2):
                for e in range(2):
                    def f(ci=ci, e=e):
                        a.wait(vm=wd_tok[kl])
                        wd_tr[kl] = a.ds(f"ds_read_b64_tr_b16 {ar(8*kl+4*ci+2*e,2)}, v{23+ci} offset:{off+1024*e}")
                    L.append(f)
            return L
        def h_dma():
            L = []
            def pre():
                if o.rotD: a.e("s_mul_i32 s92, s71, 7\ns_lshr_b32 s92, s92, 3")
                else: a.e("s_mov_b32 s92, 0")
                a.e(f"""s_mov_b32 s93, s92
                       s_mul_i32 s94, s68, {448*896}
                       s_lshl_b32 s3, s72, 7
                       s_add_u32 s94, s94, s3
                       s_mul_i32 s96, s73, {HCH}
                       s_mul_i32 s3, s74, {521*16}
                       s_add_u32 s96, s96, s3
                       s_add_u32 s96, s96, {HB+64}
                       s_lshl_b32 s97, s74, 3""")
            L.append(pre)
            for sl in range(2):
                for i in range(4):
                    def f(sl=sl, i=i):
                        if i == 0 and sl == 0: a.e("s_mov_b32 m0, s96\ns_nop 0")
                        if i == 0 and sl == 1: a.e(f"s_lshl_b32 s3, s74, 4\ns_sub_u32 s96, s96, s3\ns_add_u32 m0, s96, {261*16}\ns_add_u32 s97, s97, 4")
                        st['h'] = a.vmem(f"buffer_load_dwordx4 v2, s[28:31], s97 offen offset:{1024*i} lds")
                    L.append(f)
            def pad():
                a.e("""v_and_b32 v27, 15, v1
                       v_add_u32 v29, v27, v28
                       v_lshlrev_b32 v29, 2, v29
                       v_subrev_u32 v29, 64, v29""")
                st['hp'] = a.vmem("buffer_load_dword v80, v29, s[28:31], 0 offen")
            L.append(pad)
            def apoll():
                st['ap'] = a.vmem("buffer_load_dword v81, off, s[36:39], 0 sc1")
            L.append(apoll)
            return L
        a.wait(vm=stage_tok[0]); a.e("s_barrier")
        self.stamp()
        for f in reads(0): f()
        order = [(0,0,0),(0,0,1),(1,0,0),(1,0,1),(0,1,0),(0,1,1),(1,1,0),(1,1,1)]
        for q in range(28):
            s, kk = divmod(q, 4); b = VB + 24*(q % 2)
            if kk == 3:
                a.wait(vm=stage_tok.get(s+1), lg=a.lg); a.e("s_barrier")
                if s+3 <= 6: slow += stage_dma(s+3)
                elif s == 4: slow += h_dma()
                elif s == 5:
                    for kl in range(4): slow += wd_dma(kl)
                elif s == 6:
                    for kl in range(4, 8): slow += wd_dma(kl)
            rd = reads(q+1) if q < 27 else []
            for n, (M, fi, ti) in enumerate(order):
                a.wait(lg=max(fr[(q,'x',ti)], fr[(q,M,fi)]))
                A = acc(M, fi, ti)
                a.e(f"v_mfma_f32_32x32x16_bf16 {vr(A,16)}, {vr(b+8+8*fi+4*M,4)}, {vr(b+4*ti,4)}, {vr(A,16) if q else 0}")
                k = 2 if n < 2 else 1
                for _ in range(k):
                    if rd: rd.pop(0)()
                if slow and (n % 2 == 1 or q == 27): slow.pop(0)()
            assert not rd
        while slow: slow.pop(0)()
        self.stamp()
        self.poll("buffer_load_dword v81, off, s[36:39], 0 sc1", st['ap'], 81, 32)
        a.e("s_lshl_b32 s3, s74, 11")
        tu = []
        for i in range(2):
            a.vmem(f"buffer_load_dwordx4 v[{96+8*i}:{99+8*i}], v2, s[32:35], s3 offen offset:{1024*i} sc1")
            tu.append(a.vmem(f"buffer_load_dword v{100+8*i}, v2, s[32:35], s3 offen offset:{1024*i+16} sc1"))
        a.e(f"""v_and_b32 v3, 31, v1
               s_lshl_b32 s3, s71, 1
               s_add_u32 s3, s3, s74
               s_lshl_b32 s3, s3, 5
               v_add_u32 v3, s3, v3              ; token
               v_lshlrev_b32 v4, 2, v3
               s_mov_b32 s3, {WS_G}""")
        st['g'] = a.vmem("buffer_load_dword v5, v4, s[20:23], s3 offen sc1")
        a.e(f"""v_mul_u32_u24 v29, 4160, v28
               v_min_u32 v30, 1, v28
               v_lshl_add_u32 v29, v30, 4, v29
               v_lshl_add_u32 v29, v27, 2, v29
               s_mul_i32 s3, s73, {HCH}
               s_add_u32 s3, s3, {HB}
               v_add_u32 v29, s3, v29""")
        a.ds("ds_write_b32 v29, v80")
        a.e(f"""s_mul_i32 s3, s73, {UCH}
               s_add_u32 s3, s3, {UB}
               s_lshl_b32 s96, s74, 11
               s_add_u32 s96, s96, s3
               v_add_u32 v6, s96, v2
               s_mul_i32 s96, s74, {U1}
               s_add_u32 s3, s3, s96
               v_lshlrev_b32 v29, 3, v1
               v_add_u32 v29, s3, v29
               v_mov_b32 v82, 0
               v_mov_b32 v83, 0""")
        a.ds("ds_write_b64 v29, v[82:83] offset:4096")
        a.e("""s_lshl_b32 s3, s69, 1
               s_add_u32 s3, s3, s73
               s_mul_i32 s96, s3, 229376
               s_lshl_b32 s75, s3, 7             ; flag line
               s_lshl_b32 s3, s70, 1
               s_add_u32 s3, s3, s74
               s_lshl_b32 s98, s3, 13
               s_add_u32 s96, s96, s98
               s_add_u32 s98, s96, 4096
               s_lshl_b32 s3, s3, 2
               s_add_u32 s102, s75, s3""".replace("s102", "s91"))
        a.e(f"s_add_u32 s91, s91, {WS_HF}")
        wdq = []
        for j in range(28):
            wdq.append(wd_read(j) + (wd_dma(j+7) if (j >= 1 and j+7 < 28) else []))
        def ustage(i):
            def f():
                a.wait(vm=tu[i]); b = 96+8*i
                for j in range(4): a.e(f"v_alignbit_b32 v{112+j}, v{b+j+1}, v{b+j}, 16")
                a.ds(f"ds_write_b128 v6, v[{b}:{b+3}] offset:{1024*i}")
                st['uw'] = a.ds(f"ds_write_b128 v6, v[112:115] offset:{1024*i+U1}")
            return f
        a.e("s_mov_b32 s88, 0xbfb8aa3b\ns_mov_b32 s89, 0xbfb8aa3b")
        fill = []
        nwd = 0
        grp = 0
        for fi in range(2):
            for ti in range(2):
                G, U = acc(0, fi, ti), acc(1, fi, ti)
                for j in range(2):
                    if nwd < 28: fill += wdq[nwd]; nwd += 1
                    if grp in (1, 3, 5, 7) and nwd < 28: fill += wdq[nwd]; nwd += 1
                    if grp == 4: fill.append(ustage(0))
                    if grp == 6: fill.append(ustage(1))
                    T = 84; P = 116 + 4*(grp % 2); g0, u0 = G+8*j, U+8*j
                    seq = []
                    if o.pk:
                        seq += [f"v_pk_mul_f32 {vr(T+2*i,2)}, {vr(g0+2*i,2)}, s[88:89]" for i in range(4)]
                        seq += [f"v_exp_f32 v{T+i}, v{T+i}" for i in range(8)]
                        seq += [f"v_pk_mul_f32 {vr(g0+2*i,2)}, {vr(g0+2*i,2)}, {vr(u0+2*i,2)}" for i in range(4)]
                        seq += [f"v_pk_add_f32 {vr(T+2*i,2)}, {vr(T+2*i,2)}, 1.0 op_sel_hi:[1,0]" for i in range(4)]
                        seq += [f"v_rcp_f32 v{T+i}, v{T+i}" for i in range(8)]
                        seq += [f"v_pk_mul_f32 {vr(g0+2*i,2)}, {vr(g0+2*i,2)}, {vr(T+2*i,2)}" for i in range(4)]
                    else:
                        seq += [f"v_mul_f32 v{T+i}, s88, v{g0+i}" for i in range(8)]
                        seq += [f"v_exp_f32 v{T+i}, v{T+i}" for i in range(8)]
                        seq += [f"v_mul_f32 v{g0+i}, v{g0+i}, v{u0+i}" for i in range(8)]
                        seq += [f"v_add_f32 v{T+i}, 1.0, v{T+i}" for i in range(8)]
                        seq += [f"v_rcp_f32 v{T+i}, v{T+i}" for i in range(8)]
                        seq += [f"v_mul_f32 v{g0+i}, v{g0+i}, v{T+i}" for i in range(8)]
                    seq += [f"v_cvt_pk_bf16_f32 v{P+i}, v{g0+2*i}, v{g0+2*i+1}" for i in range(4)]
                    if grp == 0: a.nop(4)
                    for n, ins in enumerate(seq):
                        a.e(ins)
                        if n % 3 == 2 and fill: fill.pop(0)()
                    while fill: fill.pop(0)()
                    st['hs'] = a.vmem(f"buffer_store_dwordx4 {vr(P,4)}, v2, s[20:23], s{96 if fi == 0 else 98} offen offset:{2048*j+1024*ti} sc1")
                    grp += 1
        a.e("v_lshl_add_u32 v29, v28, 2, v27\nv_mov_b32 v30, s99")
        for j in range(4):
            a.e(f"v_cmp_eq_u32 vcc, {15-j}, v29\ns_nop 1\nv_cndmask_b32 v{240+j}, 0, v30, vcc")
        a.wait(vm=st['h'], lg=a.lg); a.e("s_barrier")
        self.stamp()
        CA, CP, CH = 128, [160, 192], 224
        cu = {}; chh = {}
        def ru(r, d):
            def f(): cu[(r,d)] = a.ds(f"ds_read_b128 {vr(CP[r%2]+4*d,4)}, v25 offset:{512*(7-d)+64*r}")
            return f
        def rh(i):
            r, jj = divmod(i, 8)
            def f(): chh[i] = a.ds(f"ds_read_b128 {vr(CH+4*(i%4),4)}, v26 offset:{512*jj+64*r}")
            return f
        for d in range(8): ru(0, d)()
        rh(0)(); rh(1)(); rh(2)()
        def hflag():
            a.wait(vm=st['hs'])
            a.e("v_mov_b32 v29, 1\ns_mov_b64 exec, 1")
            a.vmem("buffer_store_dword v29, off, s[20:23], s91 sc1")
            a.e("s_mov_b64 exec, -1")
        HP = "buffer_load_dword v81, v7, s[20:23], s90 offen sc1"
        def hpoll():
            a.e(f"""v_and_b32 v7, 7, v1
                   v_min_u32 v7, 6, v7
                   s_mul_i32 s3, s68, 7
                   v_add_lshl_u32 v7, v7, s3, 2
                   s_lshl_b32 s90, s71, 7
                   s_add_u32 s90, s90, {WS_HF}""")
            st['hp2'] = a.vmem(HP)
        ml = [("d", mt) for mt in range(8)]
        for r in range(4):
            for jj in range(8):
                for mt in range(jj, 8): ml.append((r, jj, mt))
        crit = []; fill = []; nm = 0; wd_every = 150 // (28 - nwd)
        for it in ml:
            if it[0] == "d":
                mt = it[1]; a.wait(lg=cu[(0,mt)])
                a.e(f"v_mfma_f32_16x16x32_bf16 {vr(CA+4*mt,4)}, {vr(CP[0]+4*mt,4)}, v[240:243], 0")
            else:
                r, jj, mt = it; i = 8*r + jj
                a.wait(lg=max(cu[(r,mt-jj)], chh[i]))
                a.e(f"v_mfma_f32_16x16x32_bf16 {vr(CA+4*mt,4)}, {vr(CP[r%2]+4*(mt-jj),4)}, {vr(CH+4*(i%4),4)}, {vr(CA+4*mt,4)}")
                if mt == jj:
                    if i + 3 < 32: crit.insert(0, rh(i+3))
                    if r < 3 and jj <= 3: crit += [ru(r+1, 2*jj), ru(r+1, 2*jj+1)]
            nm += 1
            if nm % wd_every == 1 and nwd < 28: fill += wdq[nwd]; nwd += 1
            if nm == o.flag_at: fill.append(hflag)
            if nm == o.hpoll_at: fill.append(hpoll)
            if crit:
                crit.pop(0)()
                if len(fill) > 4: fill.pop(0)()
            elif fill: fill.pop(0)()
        assert not crit
        while nwd < 28: fill += wdq[nwd]; nwd += 1
        while fill: fill.pop(0)()
        self.stamp()
        self.poll(HP, st['hp2'], 81, 1)
        a.e(f"""s_mul_i32 s94, s71, 229376
               s_mul_i32 s3, s68, 57344
               s_add_u32 s94, s94, s3
               s_mov_b32 s92, s93
               s_lshl_b32 s3, s74, 10
               v_add_u32 v17, s3, v2
               v_xor_b32 v18, 1024, v17""")
        ring = [32+4*i for i in range(8)] + [160+4*i for i in range(24)]
        ht = {}
        def hload(kl):
            def f0():
                a.e("s_lshl_b32 s97, s92, 11\ns_add_u32 s97, s97, s94")
                a.vmem(f"buffer_load_dwordx4 {vr(ring[(2*kl)%32],4)}, v17, s[20:23], s97 offen sc1")
            def f1():
                ht[kl] = a.vmem(f"buffer_load_dwordx4 {vr(ring[(2*kl+1)%32],4)}, v18, s[20:23], s97 offen sc1")
                a.e("s_add_u32 s92, s92, 1\ns_cmp_eq_u32 s92, 28\ns_cselect_b32 s92, 0, s92")
            return [f0, f1]
        AHEAD = 12; AH0 = 4
        for kl in range(AH0):
            for f in hload(kl): f()
        a.e(f"""v_add_u32 v8, s95, v2
               s_xor_b32 s3, s95, 4096
               v_add_u32 v9, s3, v2
               s_cmp_eq_u32 s74, 0
               s_cbranch_scc1 L_keep""")
        for i in range(16): a.e(f"v_swap_b32 v{CA+i}, v{CA+16+i}")
        a.label("L_keep")
        for i in range(4): a.ds(f"ds_write_b128 v8, {vr(CA+16+4*i,4)} offset:{EXB+1024*i}")
        a.wait(lg=a.lg); a.e("s_barrier")
        t = [a.ds(f"ds_read_b128 {vr(CA+16+4*i,4)}, v9 offset:{EXB+1024*i}") for i in range(4)]
        a.e(f"""v_lshl_add_u32 v10, v28, 5, v27
               v_lshlrev_b32 v10, 2, v10
               s_lshl_b32 s3, s68, 11
               s_add_u32 s3, s3, {ZRB}
               v_add_u32 v10, s3, v10
               v_add_u32 v11, s3, v2""")
        for i in range(4):
            a.wait(lg=t[i])
            for h in range(2):
                b = CA+4*i+2*h
                a.e(f"v_pk_add_f32 {vr(b,2)}, {vr(b,2)}, {vr(b+16,2)}")
            for h in range(2):
                b = CA+4*i+2*h
                a.e(f"v_cvt_pk_bf16_f32 v{b}, v{b}, v{b+1}")
                a.ds(f"ds_write_b32 v10, v{b} offset:{512*i+64*h}")
        a.wait(lg=a.lg)
        t = [a.ds(f"ds_read_b128 {vr(CA+16+4*i,4)}, v11 offset:{1024*i}") for i in range(2)]
        a.e("s_lshl_b32 s3, s74, 11\ns_add_u32 s100, s100, s3")
        for i in range(2):
            a.wait(lg=t[i])
            st['zs'] = a.vmem(f"buffer_store_dwordx4 {vr(CA+16+4*i,4)}, v2, s[20:23], s100 offen offset:{1024*i} sc1")
        for kl in range(AH0, AHEAD):
            for f in hload(kl): f()
        self.stamp()
        a.e(f"""v_mul_u32_u24 v12, 896, v3
               v_lshrrev_b32 v29, 5, v1
               s_lshl_b32 s3, s72, 1
               s_add_u32 s3, s3, s73
               s_lshl_b32 s3, s3, 6
               v_add_u32 v12, s3, v12
               v_lshl_add_u32 v13, v29, 4, v12
               v_lshl_add_u32 v12, v29, 3, v12   ; q address""")
        Q, Z, GQ = 128, 136, 144
        tq = [a.vmem(f"buffer_load_dwordx2 {vr(Q+2*j,2)}, v12, s[4:7], 0 offen offset:{16*j}") for j in range(4)]
        def zflag():
            a.wait(vm=st['zs'])
            a.e(f"""s_lshl_b32 s3, s72, 1
                   s_add_u32 s3, s3, s74
                   s_lshl_b32 s3, s3, 1
                   s_lshr_b32 s96, s71, 4
                   s_add_u32 s3, s3, s96
                   s_lshl_b32 s3, s3, 5
                   s_and_b32 s96, s71, 15
                   s_lshl_b32 s96, s96, 1
                   s_add_u32 s3, s3, s96
                   s_add_u32 s3, s3, s73
                   s_lshl_b32 s3, s3, 2
                   s_add_u32 s3, s3, {WS_ZF}
                   v_mov_b32 v29, 1
                   s_mov_b64 exec, 1""")
            a.vmem("buffer_store_dword v29, off, s[20:23], s3 sc1")
            a.e("s_mov_b64 exec, -1")
        ZP = "buffer_load_dword v81, v7, s[20:23], s90 offen sc1".replace("v81", "v31")
        def zpoll():
            a.e(f"""v_and_b32 v7, 31, v1
                   v_lshlrev_b32 v7, 2, v7
                   s_lshl_b32 s3, s72, 1
                   s_lshr_b32 s96, s71, 4
                   s_add_u32 s3, s3, s96
                   s_lshl_b32 s3, s3, 1
                   s_add_u32 s3, s3, s73
                   s_lshl_b32 s3, s3, 7
                   s_add_u32 s90, s3, {WS_ZF}""")
            st['zp'] = a.vmem(ZP)
        def zload():
            self.poll(ZP, st['zp'], 31, 1)
            a.e(f"""v_lshrrev_b32 v14, 2, v1
                   v_lshlrev_b32 v14, 12, v14
                   v_and_b32 v29, 3, v1
                   v_lshl_add_u32 v14, v29, 4, v14
                   v_add_u32 v15, {16*4096-1024}, v14
                   s_lshl_b32 s3, s72, 1
                   s_add_u32 s3, s3, s73
                   s_lshl_b32 s3, s3, 17
                   s_lshl_b32 s96, s71, 1
                   s_add_u32 s96, s96, s74
                   s_lshl_b32 s96, s96, 6
                   s_add_u32 s3, s3, s96
                   s_add_u32 s3, s3, {WS_Z}
                   s_lshl_b32 s96, s68, 11
                   s_add_u32 m0, s96, {ZSB}
                   v_bfe_u32 v29, v1, 2, 2
                   v_lshrrev_b32 v30, 5, v1
                   v_lshl_add_u32 v29, v30, 2, v29
                   v_lshlrev_b32 v29, 6, v29
                   v_and_b32 v30, 1, v28
                   v_lshl_add_u32 v29, v30, 5, v29
                   v_and_b32 v30, 3, v1
                   v_lshl_add_u32 v29, v30, 3, v29
                   v_add_u32 v16, s96, v29""")
            a.vmem("buffer_load_dwordx4 v14, s[20:23], s3 offen sc1 lds")
            st['zl'] = a.vmem("buffer_load_dwordx4 v15, s[20:23], s3 offen offset:1024 sc1 lds")
        DA = 64
        def dacc(ci, ti): return DA + 16*(2*ci+ti)
        fill = []
        for kl in range(28):
            if kl + AHEAD < 28: fill += hload(kl+AHEAD)
            if kl == AH0: fill.append(zflag)
            if kl == 17: fill.append(zpoll)
            if kl == 22: fill.append(zload)
            a.wait(vm=ht[kl])
            if kl == 0: a.wait(lg=wd_tr[27])
            for ci in range(2):
                for ti in range(2):
                    A = dacc(ci, ti)
                    a.e(f"v_mfma_f32_32x32x16_bf16 {vr(A,16)}, {ar(8*kl+4*ci,4)}, {vr(ring[(2*kl+ti)%32],4)}, {vr(A,16) if kl else 0}")
                    if fill: fill.pop(0)()
            while fill: fill.pop(0)()
        self.stamp()
        a.wait(vm=st['zl'])
        tz = [a.ds(f"ds_read_b64_tr_b16 {vr(Z+2*j,2)}, v16 offset:{ZSB+512*j}") for j in range(4)]
        for x in range(1, 4):
            a.e(f"s_xor_b32 s3, s68, {x}\ns_mul_i32 s3, s3, 12288\ns_add_u32 s3, s3, {RB+4096*(x-1)}\nv_add_u32 v{8+x}, s3, v2")
        for x in range(1, 4):
            for i in range(4): a.ds(f"ds_write_b128 v{8+x}, {vr(DA+16*x+4*i,4)} offset:{1024*i}")
        a.wait(lg=tz[3])
        for j in range(4):
            for h in range(2):
                q_, z_, o_ = Q+2*j+h, Z+2*j+h, GQ+4*j+2*h
                a.e(f"""v_lshlrev_b32 v{o_}, 16, v{q_}
                       v_and_b32 v{o_+1}, 0xffff0000, v{q_}
                       v_lshlrev_b32 v30, 16, v{z_}
                       v_and_b32 v31, 0xffff0000, v{z_}
                       v_pk_mul_f32 {vr(o_,2)}, {vr(o_,2)}, v[30:31]""")
        a.e("v_mov_b32 v4, v5\nv_sub_f32 v6, 1.0, v5\nv_sub_f32 v7, 1.0, v5")
        for j in range(8): a.e(f"v_pk_mul_f32 {vr(GQ+2*j,2)}, {vr(GQ+2*j,2)}, v[4:5]")
        a.wait(lg=a.lg); a.e("s_barrier")
        a.e(f"s_mul_i32 s3, s68, 12288\ns_add_u32 s3, s3, {RB}\nv_add_u32 v8, s3, v2")
        R = 160
        t = [a.ds(f"ds_read_b128 {vr(R+4*i,4)}, v8 offset:{1024*i}") for i in range(12)]
        for p in range(3):
            for i in range(4):
                a.wait(lg=t[4*p+i])
                for h in range(2):
                    b = DA+4*i+2*h
                    a.e(f"v_pk_add_f32 {vr(b,2)}, {vr(b,2)}, {vr(R+16*p+4*i+2*h,2)}")
        for j in range(8): a.e(f"v_pk_fma_f32 {vr(DA+2*j,2)}, {vr(DA+2*j,2)}, v[6:7], {vr(GQ+2*j,2)}")
        for j in range(8): a.e(f"v_cvt_pk_bf16_f32 v{R+j}, v{DA+2*j}, v{DA+2*j+1}")
        a.e("s_nop 1")
        for jp in range(2):
            a.e(f"v_permlane32_swap_b32 v{R+4*jp}, v{R+4*jp+2}\nv_permlane32_swap_b32 v{R+4*jp+1}, v{R+4*jp+3}")
        for jp in range(2):
            a.vmem(f"buffer_store_dwordx4 {vr(R+4*jp,4)}, v13, s[24:27], 0 offen offset:{32*jp}")
        self.stamp()
        self.dump_stamps()
        a.label("L_end")
        a.e("s_endpgm")

    def build(self):
        self.prologue(); self.worker(); self.helper()
        errs = check_hazards(self.a.lines)
        for e in errs: print("HAZARD", e, file=sys.stderr)
        hdr = open("gated_mix__ssm_conv_h3__swiglu_ffn__prompt.s.ref").read().split("\n")
        top = [l for l in hdr if l.startswith(";") and "@launch" not in l]
        txt = "\n".join(top) + f"\n; @launch grid=(256,1,1) block=(256,1,1) lds={LDS}\n"
        txt += f'.amdgcn_target "amdgcn-amd-amdhsa--gfx950"\n.text\n.globl {NAME}\n.p2align 8\n.type {NAME},@function\n{NAME}:\n'
        txt += self.a.text()
        txt += f""".section .rodata,"a"
.p2align 6
.amdhsa_kernel {NAME}
  .amdhsa_next_free_vgpr 512
  .amdhsa_next_free_sgpr 102
  .amdhsa_accum_offset 256
  .amdhsa_group_segment_fixed_size 0
  .amdhsa_kernarg_size 112
  .amdhsa_user_sgpr_count 2
  .amdhsa_user_sgpr_kernarg_segment_ptr 1
  .amdhsa_system_sgpr_workgroup_id_x 1
  .amdhsa_float_denorm_mode_32 3
.end_amdhsa_kernel
"""
        return txt, errs

def make(**kw):
    o = Opt()
    for k, v in kw.items(): setattr(o, k, v)
    return Gen(o).build()[0]

if __name__ == "__main__":
    kw = {}
    out = "gated_mix__ssm_conv_h3__swiglu_ffn__prompt.s"
    for x in sys.argv[1:]:
        if "=" in x:
            k, v = x.split("="); kw[k] = eval(v)
        else: out = x
    open(out, "w").write(make(**kw))
```
